```python
import torch

def _softmax(x, axis=-1):
    return torch.softmax(x, dim=axis)
def _gelu(x):
    return torch.nn.functional.gelu(x, approximate="tanh")
def _silu(x):
    return torch.nn.functional.silu(x)
def _sigmoid(x):
    return torch.sigmoid(x)
def _layernorm(x, axis=-1, eps=1e-5):
    m = x.mean(dim=axis, keepdim=True)
    v = x.var(dim=axis, keepdim=True, unbiased=False)
    return (x - m) / torch.sqrt(v + eps)
def _scatter_add(tgt, idx, src, axis=0):
    return tgt.clone().index_add_(axis, idx, src)
def _segment_sum(src, seg, n):
    out = torch.zeros((n,) + src.shape[1:], dtype=src.dtype)
    return out.index_add_(0, seg, src)
def _pad(x, pw):
    flat = tuple(v for pair in reversed(pw) for v in pair)
    return torch.nn.functional.pad(x, flat)

kernel_name = 'parallel_sum__sliding_local_dilated__dense_activation_relu__prompt'

def setup_inputs():

    _w = (lambda a: (lambda t: t.to(torch.bfloat16) if t.is_floating_point() else t)(torch.as_tensor(a)))
    def _A_setup():
        B, S, D = 1, 2048, 1024
        return {
            "x": _w((lambda *s: torch.randn(*s, dtype=torch.bfloat16) * 0.05)(B, S, D)),
            "wqkv": _w((lambda *s: torch.randn(*s, dtype=torch.bfloat16) * 0.05)(D, 3 * D)),
            "wo": _w((lambda *s: torch.randn(*s, dtype=torch.bfloat16) * 0.05)(D, D)),
        }
    _A_in = _A_setup()

    def _B_setup():
        B, S, D, Dff = 1, 2048, 1024, 3584
        return {
            "x": _w((lambda *s: torch.randn(*s, dtype=torch.bfloat16) * 0.05)(B, S, D)),
            "w1": _w((lambda *s: torch.randn(*s, dtype=torch.bfloat16) * 0.05)(D, Dff)),
            "w2": _w((lambda *s: torch.randn(*s, dtype=torch.bfloat16) * 0.05)(Dff, D)),
        }
    _B_in = _B_setup()

    return {
        "A_x": _A_in["x"],
        "A_wqkv": _A_in["wqkv"],
        "A_wo": _A_in["wo"],
        "B_x": _B_in["x"],
        "B_w1": _B_in["w1"],
        "B_w2": _B_in["w2"],
    }

def reference(A_x, A_wqkv, A_wo, B_x, B_w1, B_w2):
    def _A_ref(x, wqkv, wo):
        B, S, D = x.shape
        H = 32; Dh = D // H
        W, dil = 8, 2
        qkv = (lambda x, *d: x.permute(*d))((x @ wqkv).reshape(B, S, 3, H, Dh), 2, 0, 3, 1, 4)
        q, k, v = qkv[0], qkv[1], qkv[2]
        scale = Dh ** -0.5
        pos = torch.arange(S)
        off = torch.arange(W) * dil
        idx = pos[:, None] - off[None, :]
        mask = idx >= 0
        idx_c = torch.where(mask, idx, 0).reshape(-1)
        kg = k[:, :, idx_c, :].reshape(B, H, S, W, Dh)
        vg = v[:, :, idx_c, :].reshape(B, H, S, W, Dh)
        logits = torch.einsum("bhsd,bhswd->bhsw", q, kg) * scale
        logits = torch.where(mask[None, None, :, :], logits, -1e9)
        attn = _softmax(logits, axis=-1)
        o = torch.einsum("bhsw,bhswd->bhsd", attn, vg)
        return (lambda x, *d: x.permute(*d))(o, 0, 2, 1, 3).reshape(B, S, D) @ wo

    def _B_ref(x, w1, w2):
        h = torch.einsum("bsd,df->bsf", x, w1)
        zero = torch.zeros_like(h)
        h = torch.maximum(h, zero)
        return torch.einsum("bsf,fd->bsd", h, w2)

    x = A_x
    xn = _layernorm(x, axis=-1)
    return x + _A_ref(xn, A_wqkv, A_wo) + _B_ref(xn, B_w1, B_w2)
```

```python
import sys

NAME = 'parallel_sum__sliding_local_dilated__dense_activation_relu__prompt'

WS_XN = 0
WS_A2 = 4 << 20
WS_PART = 24 << 20
WS_FLAG = 32 << 20
A2_PITCH = 9216
SRD3 = 0x00020000


class Asm:
    def __init__(self):
        self.l = []

    def __call__(self, s):
        self.l.append('    ' + s)

    def label(self, s):
        self.l.append(s + ':')

    def c(self, s):
        self.l.append('    ; ' + s)

    def text(self):
        return '\n'.join(self.l) + '\n'


def vr(a, n):
    return 'v[%d:%d]' % (a, a + n - 1) if n > 1 else 'v%d' % a


def sr(a, n):
    return 's[%d:%d]' % (a, a + n - 1) if n > 1 else 's%d' % a


def srd(a, d, blo, bhi, nbytes, add=0):
    if add:
        a('s_add_u32 s%d, s%d, 0x%x' % (d, blo, add))
        a('s_addc_u32 s%d, s%d, 0' % (d + 1, bhi))
    else:
        a('s_mov_b32 s%d, s%d' % (d, blo))
        a('s_mov_b32 s%d, s%d' % (d + 1, bhi))
    a('s_mov_b32 s%d, 0x%x' % (d + 2, nbytes))
    a('s_mov_b32 s%d, 0x%x' % (d + 3, SRD3))


def interleave(a, mfmas, fillers, start=0, per_gap=None):
    n = len(mfmas)
    nf = len(fillers)
    gaps = n - start
    fi = 0
    for k, m in enumerate(mfmas):
        a(m)
        if k >= start:
            if per_gap is not None:
                want = min(nf, (k - start + 1) * per_gap)
            else:
                want = (nf * (k - start + 1) + gaps - 1) // gaps
            while fi < want:
                a(fillers[fi])
                fi += 1
    while fi < nf:
        a(fillers[fi])
        fi += 1


def kernel_header(a, name):
    a.l.append('.globl %s' % name)
    a.l.append('.p2align 8')
    a.l.append('.type %s,@function' % name)
    a.label(name)


def kernel_desc(name, vgpr, sgpr):
    acc = (vgpr + 3) // 4 * 4
    return '''.p2align 6
.amdhsa_kernel %s
  .amdhsa_next_free_vgpr %d
  .amdhsa_next_free_sgpr %d
  .amdhsa_accum_offset %d
  .amdhsa_group_segment_fixed_size 0
  .amdhsa_kernarg_size 72
  .amdhsa_user_sgpr_count 2
  .amdhsa_user_sgpr_kernarg_segment_ptr 1
  .amdhsa_system_sgpr_workgroup_id_x 1
.end_amdhsa_kernel
''' % (name, vgpr, sgpr, acc)


def wave_reduce_add(a, v, t):
    a('s_nop 1')
    a('v_add_f32_dpp v%d, v%d, v%d quad_perm:[1,0,3,2] row_mask:0xf bank_mask:0xf' % (v, v, v))
    a('s_nop 1')
    a('v_add_f32_dpp v%d, v%d, v%d quad_perm:[2,3,0,1] row_mask:0xf bank_mask:0xf' % (v, v, v))
    a('s_nop 1')
    a('v_add_f32_dpp v%d, v%d, v%d row_half_mirror row_mask:0xf bank_mask:0xf' % (v, v, v))
    a('s_nop 1')
    a('v_add_f32_dpp v%d, v%d, v%d row_mirror row_mask:0xf bank_mask:0xf' % (v, v, v))
    a('v_mov_b32 v%d, v%d' % (t, v))
    a('s_nop 1')
    a('v_permlane16_swap_b32 v%d, v%d' % (v, t))
    a('s_nop 1')
    a('v_add_f32 v%d, v%d, v%d' % (v, v, t))
    a('v_mov_b32 v%d, v%d' % (t, v))
    a('s_nop 1')
    a('v_permlane32_swap_b32 v%d, v%d' % (v, t))
    a('s_nop 1')
    a('v_add_f32 v%d, v%d, v%d' % (v, v, t))


def round_bf16(a, v):
    a('v_cvt_pk_bf16_f32 v%d, v%d, v%d' % (v, v, v))
    a('v_lshlrev_b32 v%d, 16, v%d' % (v, v))


def gen_k0(a):
    kernel_header(a, 'ln_kernel')
    a('s_cmp_ge_u32 s2, 512')
    a('s_cbranch_scc1 L_k0_end')
    a('s_load_dwordx2 s[4:5], s[0:1], 0')
    a('s_load_dwordx2 s[6:7], s[0:1], 64')
    a('v_lshrrev_b32 v1, 6, v0')
    a('v_and_b32 v2, 63, v0')
    a('s_lshl_b32 s3, s2, 2')
    a('v_add_u32 v1, s3, v1')
    a('v_lshlrev_b32 v1, 11, v1')
    a('v_lshl_add_u32 v1, v2, 4, v1')
    a('s_waitcnt lgkmcnt(0)')
    srd(a, 8, 4, 5, 2048 * 2048)
    srd(a, 12, 6, 7, 2048 * 2048, add=WS_XN)
    srd(a, 16, 6, 7, 1024 * 128, add=WS_FLAG)
    a('buffer_load_dwordx4 v[4:7], v1, s[8:11], 0 offen')
    a('buffer_load_dwordx4 v[8:11], v1, s[8:11], 0 offen offset:1024')
    a('s_lshl_b32 s3, s2, 1')
    a('v_add_u32 v3, s3, v0')
    a('v_lshlrev_b32 v3, 7, v3')
    a('v_mov_b32 v12, 0')
    a('v_cmp_gt_u32 vcc, 2, v0')
    a('s_and_saveexec_b64 s[20:21], vcc')
    a('s_cbranch_execz L_k0_noflag')
    a('buffer_store_dword v12, v3, s[16:19], 0 offen')
    a.label('L_k0_noflag')
    a('s_mov_b64 exec, s[20:21]')
    a('s_mov_b32 s22, 0xffff0000')
    a('s_waitcnt vmcnt(0)')
    for k in range(8):
        a('v_lshlrev_b32 v%d, 16, v%d' % (16 + 2 * k, 4 + k))
        a('v_and_b32 v%d, s22, v%d' % (17 + 2 * k, 4 + k))
    for k in range(8):
        a('v_add_f32 v%d, v%d, v%d' % (32 + k, 16 + k, 24 + k))
    for k in range(4):
        a('v_add_f32 v%d, v%d, v%d' % (32 + k, 32 + k, 36 + k))
    a('v_add_f32 v32, v32, v34')
    a('v_add_f32 v33, v33, v35')
    a('v_add_f32 v32, v32, v33')
    wave_reduce_add(a, 32, 33)
    a('v_mul_f32 v32, 0x3a800000, v32')
    for k in range(16):
        a('v_sub_f32 v%d, v%d, v32' % (40 + k, 16 + k))
    a('v_mul_f32 v34, v40, v40')
    a('v_mul_f32 v35, v41, v41')
    for k in range(2, 16, 2):
        a('v_fmac_f32 v34, v%d, v%d' % (40 + k, 40 + k))
        a('v_fmac_f32 v35, v%d, v%d' % (41 + k, 41 + k))
    a('v_add_f32 v34, v34, v35')
    wave_reduce_add(a, 34, 33)
    a('v_mul_f32 v34, 0x3a800000, v34')
    round_bf16(a, 34)
    a('v_add_f32 v34, 0x3727c5ac, v34')
    round_bf16(a, 34)
    a('v_sqrt_f32 v34, v34')
    a('s_nop 0')
    round_bf16(a, 34)
    a('v_rcp_f32 v35, v34')
    round_bf16(a, 32)
    for k in range(16):
        a('v_sub_f32 v%d, v%d, v32' % (40 + k, 16 + k))
    for k in range(8):
        a('v_cvt_pk_bf16_f32 v%d, v%d, v%d' % (4 + k, 40 + 2 * k, 41 + 2 * k))
    for k in range(8):
        a('v_lshlrev_b32 v%d, 16, v%d' % (16 + 2 * k, 4 + k))
        a('v_and_b32 v%d, s22, v%d' % (17 + 2 * k, 4 + k))
    for k in range(16):
        a('v_mul_f32 v%d, v%d, v35' % (40 + k, 16 + k))
    for k in range(16):
        a('v_fma_f32 v%d, -v%d, v34, v%d' % (16 + k, 40 + k, 16 + k))
    for k in range(16):
        a('v_fmac_f32 v%d, v%d, v35' % (40 + k, 16 + k))
    for k in range(8):
        a('v_cvt_pk_bf16_f32 v%d, v%d, v%d' % (4 + k, 40 + 2 * k, 41 + 2 * k))
    a('buffer_store_dwordx4 v[4:7], v1, s[12:15], 0 offen')
    a('buffer_store_dwordx4 v[8:11], v1, s[12:15], 0 offen offset:1024')
    a.label('L_k0_end')
    a('s_endpgm')


class K1Cfg:
    pass


def k1_type(a, typ):
    H = typ == 'h'
    P = 'L_k1%s_' % typ
    NJ = 7 if H else 6
    NX = 4 if H else 5
    ASLOT = 32768 if H else 34816
    BSLOT = 16384 if H else 12288
    BBASE = 3 * ASLOT
    PITCHB = 7168 if H else 6144
    vW = [8 + j for j in range(NJ)]
    vXb0, vXb1, vXa, vXb = 16, 17, 18, 19
    vHb0, vHb1, vHa, vHb = 20, 21, 22, 23
    voffA = [24, 25, 26, 27]
    voffB = [28, 29]
    voffH = 30
    vt = [31, 32, 33, 34, 35, 36, 37, 38, 39]
    FS = [40, 84]
    ACC = 128

    def XF(s, i):
        return FS[s] + 4 * i

    def WF(s, j):
        return FS[s] + 4 * NX + 4 * j

    def acc(i, j):
        return ACC + 4 * (j * 4 + i)
    accH = ACC + 4 * 24
    NACC = 112 if H else 100
    sA, sB, sO = 8, 12, 16
    s_rdA, s_wrA, s_kA, s_kB, s_wAw, s_wB, s_cnt, s_kH = 30, 31, 32, 33, 34, 35, 36, 37
    s_t0, s_t1, s_t2 = 40, 41, 42
    s_exlo = 44

    a.label(P + 'start')
    srd(a, sA, 20, 21, 2048 * 2048, add=WS_XN)
    if H:
        srd(a, sB, 6, 7, 1024 * 7168)
    else:
        srd(a, sB, 4, 5, 1024 * 6144)
    srd(a, sO, 20, 21, 2048 * A2_PITCH, add=WS_A2)
    e, sl = vt[0], vt[1]
    a('v_lshrrev_b32 v%d, 3, v2' % e)
    a('v_and_b32 v%d, 7, v2' % sl)
    a('v_xor_b32 v%d, v%d, v%d' % (vt[2], sl, e))
    a('v_lshlrev_b32 v%d, 4, v%d' % (vt[2], vt[2]))
    a('s_lshl_b32 s%d, s22, 5' % s_t0)
    a('v_add_u32 v%d, s%d, v%d' % (vt[3], s_t0, e))
    a('v_lshl_add_u32 v%d, v%d, 11, v%d' % (voffA[0], vt[3], vt[2]))
    for q in range(1, 4):
        a('v_add_u32 v%d, 0x%x, v%d' % (voffA[q], q * 16384, voffA[0]))
    a('v_lshrrev_b32 v%d, 2, v%d' % (vt[2], e))
    a('v_and_b32 v%d, 3, v%d' % (vt[3], e))
    a('v_lshl_add_u32 v%d, v%d, 3, v%d' % (vt[2], vt[2], vt[3]))
    a('v_and_b32 v%d, 6, v%d' % (vt[3], e))
    a('v_xor_b32 v%d, v%d, v%d' % (vt[3], vt[3], sl))
    a('v_lshlrev_b32 v%d, 4, v%d' % (vt[3], vt[3]))
    a('s_mov_b32 s%d, %d' % (s_t2, PITCHB))
    if H:
        a('s_lshl_b32 s%d, s24, 2' % s_t0)
        a('v_add_u32 v%d, s%d, v%d' % (vt[2], s_t0, vt[2]))
        a('v_mul_lo_u32 v%d, v%d, s%d' % (vt[2], vt[2], s_t2))
        a('v_add_u32 v%d, v%d, v%d' % (vt[2], vt[2], vt[3]))
        a('s_lshl_b32 s%d, s23, 7' % s_t0)
        a('v_add_u32 v%d, s%d, v%d' % (voffB[0], s_t0, vt[2]))
        a('v_add_u32 v%d, 0x%x, v%d' % (voffB[1], 16 * PITCHB, voffB[0]))
        a('s_mul_i32 s%d, s26, 448' % s_kB)
        a('s_and_b32 s%d, s26, 1' % s_t0)
        a('s_lshl_b32 s%d, s%d, 6' % (s_t0, s_t0))
        a('s_sub_u32 s%d, s%d, s%d' % (s_kB, s_kB, s_t0))
        a('s_lshl_b32 s%d, s22, 11' % s_wB)
        a('s_add_u32 s%d, s%d, 0x%x' % (s_wB, s_wB, BBASE))
    else:
        a('s_and_b32 s%d, s22, 1' % s_t0)
        a('s_lshl_b32 s%d, s%d, 4' % (s_t0, s_t0))
        a('s_and_b32 s%d, s22, 2' % s_t1)
        a('s_lshl_b32 s%d, s%d, 1' % (s_t1, s_t1))
        a('s_add_u32 s%d, s%d, s%d' % (s_t0, s_t0, s_t1))
        a('v_add_u32 v%d, s%d, v%d' % (vt[2], s_t0, vt[2]))
        a('v_mul_lo_u32 v%d, v%d, s%d' % (vt[2], vt[2], s_t2))
        a('v_add_u32 v%d, v%d, v%d' % (vt[2], vt[2], vt[3]))
        a('s_lshr_b32 s%d, s22, 2' % s_t0)
        a('s_lshl_b32 s%d, s%d, 11' % (s_t0, s_t0))
        a('v_add_u32 v%d, s%d, v%d' % (voffB[0], s_t0, vt[2]))
        a('s_and_b32 s%d, s22, 3' % s_t0)
        a('s_lshl_b32 s%d, s%d, 3' % (s_t0, s_t0))
        a('s_lshr_b32 s%d, s22, 2' % s_t1)
        a('s_lshl_b32 s%d, s%d, 2' % (s_t1, s_t1))
        a('s_add_u32 s%d, s%d, s%d' % (s_t0, s_t0, s_t1))
        a('v_and_b32 v%d, 3, v%d' % (vt[4], e))
        a('v_add_u32 v%d, s%d, v%d' % (vt[2], s_t0, vt[4]))
        a('v_mul_lo_u32 v%d, v%d, s%d' % (vt[2], vt[2], s_t2))
        a('s_lshl_b32 s%d, s22, 2' % s_t0)
        a('v_add_u32 v%d, s%d, v%d' % (vt[3], s_t0, vt[4]))
        a('v_and_b32 v%d, 6, v%d' % (vt[3], vt[3]))
        a('v_xor_b32 v%d, v%d, v%d' % (vt[3], vt[3], sl))
        a('v_lshl_add_u32 v%d, v%d, 4, v%d' % (vt[2], vt[3], vt[2]))
        a('v_add_u32 v%d, 0x1000, v%d' % (voffB[1], vt[2]))
        a('s_lshl_b32 s%d, s26, 7' % s_kB)
        a('s_lshl_b32 s%d, s22, 10' % s_wB)
        a('s_add_u32 s%d, s%d, 0x%x' % (s_wB, s_wB, BBASE))
        a('s_lshl_b32 s38, s22, 9')
        a('s_add_u32 s38, s38, 0x%x' % (BBASE + 8192))
        a('v_and_b32 v%d, 1, v%d' % (vt[4], e))
        a('s_lshl_b32 s%d, s22, 1' % s_t0)
        a('v_add_u32 v%d, s%d, v%d' % (vt[2], s_t0, vt[4]))
        a('v_and_b32 v%d, 7, v%d' % (vt[3], vt[2]))
        a('v_xor_b32 v%d, v%d, v%d' % (vt[3], vt[3], sl))
        a('v_lshlrev_b32 v%d, 4, v%d' % (vt[3], vt[3]))
        a('v_lshl_add_u32 v%d, v%d, 11, v%d' % (voffH, vt[2], vt[3]))
        a('s_lshl_b32 s%d, s25, 8' % s_kH)
        a('s_sub_i32 s%d, s%d, 16' % (s_kH, s_kH))
        a('s_max_i32 s%d, s%d, 0' % (s_kH, s_kH))
        a('s_lshl_b32 s%d, s%d, 11' % (s_kH, s_kH))
        a('s_lshl_b32 s39, s22, 8')
        a('s_add_u32 s39, s39, 0x8000')
    a('s_lshl_b32 s%d, s25, 19' % s_kA)
    a('s_lshl_b32 s%d, s22, 12' % s_wAw)

    def dmaA(slot_sreg_or_imm, q, first_of_unit=False):
        if isinstance(slot_sreg_or_imm, int):
            m = 's_add_u32 m0, s%d, 0x%x' % (s_wAw, slot_sreg_or_imm + q * 1024)
        else:
            m = 's_add_u32 m0, %s, 0x%x' % (slot_sreg_or_imm, q * 1024)
        return [m, 'buffer_load_dwordx4 v%d, %s, s%d offen lds' % (voffA[q], sr(sA, 4), s_kA)]

    def dmaH(slot):
        if isinstance(slot, int):
            m = 's_add_u32 m0, s39, 0x%x' % slot
        else:
            m = 's_add_u32 m0, s39, %s' % slot
        return [m, 's_mov_b64 exec, 0xffff\n    '
                'buffer_load_dwordx4 v%d, %s, s%d offen lds\n    ' % (voffH, sr(sA, 4), s_kH) +
                's_mov_b64 exec, -1']

    def dmaB(slot, i):
        if H:
            return ['s_add_u32 m0, s%d, 0x%x' % (s_wB, slot * BSLOT + i * 1024),
                    'buffer_load_dwordx4 v%d, %s, s%d offen lds' % (voffB[i], sr(sB, 4), s_kB)]
        if i == 0:
            return ['s_add_u32 m0, s%d, 0x%x' % (s_wB, slot * BSLOT),
                    'buffer_load_dwordx4 v%d, %s, s%d offen lds' % (voffB[0], sr(sB, 4), s_kB)]
        return ['s_add_u32 m0, s38, 0x%x' % (slot * BSLOT), 's_mov_b32 exec_hi, 0\n    '
                'buffer_load_dwordx4 v%d, %s, s%d offen lds\n    ' % (voffB[1], sr(sB, 4), s_kB) +
                's_mov_b32 exec_hi, -1']

    def emit_plain(lst):
        for k, s in enumerate(lst):
            a(s)
            if s.startswith('s_add_u32 m0') and not lst[k + 1].startswith('s_mov'):
                a('s_nop 0')

    advB = 's_add_u32 s%d, s%d, 0x%x' % (s_kB, s_kB, 32 * PITCHB)
    advA = ['s_add_u32 s%d, s%d, 128' % (s_kA, s_kA)]
    if not H:
        advA.append('s_add_u32 s%d, s%d, 128' % (s_kH, s_kH))
    nA1 = 2 if H else 3
    nA2 = 2
    emit_plain(dmaA(0, 0) + dmaA(0, 1) + ([] if H else dmaH(0)))
    emit_plain(dmaB(0, 0) + dmaB(0, 1) + [advB])
    emit_plain(dmaA(0, 2) + dmaA(0, 3) + advA)
    emit_plain(dmaB(1, 0) + dmaB(1, 1) + [advB])
    emit_plain(dmaA(ASLOT, 0) + dmaA(ASLOT, 1) + ([] if H else dmaH(ASLOT)))
    emit_plain(dmaB(2, 0) + dmaB(2, 1) + [advB])
    emit_plain(dmaA(ASLOT, 2) + dmaA(ASLOT, 3) + advA)
    emit_plain(dmaB(3, 0) + dmaB(3, 1) + [advB])
    emit_plain(dmaA(2 * ASLOT, 0) + dmaA(2 * ASLOT, 1) + ([] if H else dmaH(2 * ASLOT)))
    a('v_and_b32 v%d, 7, v3' % vt[0])
    a('v_xor_b32 v%d, v%d, v4' % (vt[0], vt[0]))
    a('v_lshlrev_b32 v%d, 4, v%d' % (vt[0], vt[0]))
    a('v_lshl_add_u32 v%d, v3, 7, v%d' % (vt[0], vt[0]))
    a('s_lshl_b32 s%d, s23, 13' % s_t0)
    a('v_add_u32 v%d, s%d, v%d' % (vXb0, s_t0, vt[0]))
    a('v_xor_b32 v%d, 64, v%d' % (vXb1, vXb0))
    if not H:
        a('v_add_u32 v%d, 0x8000, v%d' % (vHb0, vt[0]))
        a('v_xor_b32 v%d, 64, v%d' % (vHb1, vHb0))
    a('v_lshrrev_b32 v%d, 2, v3' % vt[0])
    a('v_lshl_add_u32 v%d, v4, 2, v%d' % (vt[0], vt[0]))
    a('v_and_b32 v%d, 6, v%d' % (vt[1], vt[0]))
    a('v_and_b32 v%d, 3, v3' % vt[2])
    a('v_lshlrev_b32 v%d, 3, v%d' % (vt[2], vt[2]))
    a('v_lshl_add_u32 v%d, v%d, 7, v%d' % (vt[2], vt[0], vt[2]))
    a('v_add_u32 v%d, 0x%x, v%d' % (vt[2], BBASE, vt[2]))
    if H:
        a('s_and_b32 s%d, s26, 1' % s_t0)
        a('s_lshl_b32 s%d, s%d, 1' % (s_t0, s_t0))
        a('s_mul_i32 s%d, s24, 7' % s_t1)
        a('s_add_u32 s46, s%d, s%d' % (s_t0, s_t1))
    for j in range(NJ):
        if H:
            a('s_add_u32 s%d, s46, %d' % (s_t0, j))
            a('s_lshr_b32 s%d, s%d, 2' % (s_t1, s_t0))
            a('s_and_b32 s%d, s%d, 3' % (s_t0, s_t0))
        else:
            a('s_add_u32 s%d, s23, %d' % (s_t0, j + 2))
            a('s_sub_u32 s%d, s%d, 6' % (s_t1, s_t0))
            a('s_cmp_ge_u32 s%d, 6' % s_t0)
            a('s_cselect_b32 s%d, s%d, s%d' % (s_t0, s_t1, s_t0))
            a('s_mov_b32 s%d, s%d' % (48 + j, s_t0))
            a('s_lshr_b32 s%d, s%d, 1' % (s_t1, s_t0))
            a('s_and_b32 s%d, s%d, 1' % (s_t0, s_t0))
            a('s_lshl_b32 s%d, s24, 1' % s_t2)
            a('s_add_u32 s%d, s%d, s%d' % (s_t0, s_t0, s_t2))
        a('s_lshl_b32 s%d, s%d, 1' % (s_t0, s_t0))
        a('s_lshl_b32 s%d, s%d, 12' % (s_t1, s_t1))
        a('v_xor_b32 v%d, s%d, v%d' % (vt[3], s_t0, vt[1]))
        a('v_lshl_add_u32 v%d, v%d, 4, v%d' % (vt[3], vt[3], vt[2]))
        a('v_add_u32 v%d, s%d, v%d' % (vW[j], s_t1, vt[3]))
    for k in range(NACC):
        a('v_mov_b32 v%d, 0' % (ACC + k))

    def reads(s, bslot, xaddr, haddr):
        r = []
        for i in range(4):
            r.append('ds_read_b128 %s, v%d offset:%d' % (vr(XF(s, i), 4), xaddr, i * 2048))
        if not H:
            r.append('ds_read_b128 %s, v%d' % (vr(XF(s, 4), 4), haddr))
        for j in range(NJ):
            r.append('ds_read_b64_tr_b16 %s, v%d offset:%d' % (vr(WF(s, j), 2), vW[j], bslot * BSLOT))
            r.append('ds_read_b64_tr_b16 %s, v%d offset:%d' % (vr(WF(s, j) + 2, 2), vW[j], bslot * BSLOT + 2048))
        return r

    def mfmas(s):
        m = []
        for j in range(NJ):
            for i in range(4):
                m.append('v_mfma_f32_16x16x32_bf16 %s, %s, %s, %s' % (vr(acc(i, j), 4), vr(WF(s, j), 4), vr(XF(s, i), 4), vr(acc(i, j), 4)))
            if j == 0 and not H:
                m.append('v_mfma_f32_16x16x32_bf16 %s, %s, %s, %s' % (vr(accH, 4), vr(WF(s, 0), 4), vr(XF(s, 4), 4), vr(accH, 4)))
        return m

    def nloads(t):
        n = 0
        if t + 4 <= 31 and t >= -4:
            n += 2
        if t % 2 == 1:
            u = (t - 1) // 2 + 3
            if 0 <= u <= 15:
                n += nA1
        else:
            u = (t - 2) // 2 + 3
            if 0 <= u <= 15:
                n += nA2
        return n

    a('s_waitcnt vmcnt(%d)' % (nloads(-3) + nloads(-2) + nloads(-1)))
    a('s_barrier')
    for s in reads(0, 0, vXb0, vHb0):
        a(s)
    a('v_mov_b32 v%d, v%d' % (vXb, vXb1))
    if not H:
        a('v_mov_b32 v%d, v%d' % (vHb, vHb1))
    a('s_mov_b32 s%d, 0' % s_rdA)
    a('s_add_u32 s%d, s%d, 0x%x' % (s_wrA, s_wAw, 2 * ASLOT))
    a('s_mov_b32 s47, 0x%x' % (2 * ASLOT))
    a('s_waitcnt vmcnt(%d) lgkmcnt(0)' % (nloads(-2) + nloads(-1)))

    def step(t, tm):
        a('s_barrier')
        fs = t % 2
        f = []
        rd = []
        last = t == 31
        if t % 2 == 1 and not last:
            f += ['s_mov_b32 s47, s%d' % s_rdA,
                  's_add_u32 s%d, s%d, s%d' % (s_wrA, s_rdA, s_wAw),
                  's_add_u32 s%d, s%d, 0x%x' % (s_rdA, s_rdA, ASLOT),
                  's_cmp_eq_u32 s%d, 0x%x' % (s_rdA, 3 * ASLOT),
                  's_cselect_b32 s%d, 0, s%d' % (s_rdA, s_rdA),
                  'v_add_u32 v%d, s%d, v%d' % (vXa, s_rdA, vXb0),
                  'v_add_u32 v%d, s%d, v%d' % (vXb, s_rdA, vXb1)]
            if not H:
                f += ['v_add_u32 v%d, s%d, v%d' % (vHa, s_rdA, vHb0),
                      'v_add_u32 v%d, s%d, v%d' % (vHb, s_rdA, vHb1)]
        if not last:
            rd = reads(1 - fs, (tm + 1) % 4, vXa if t % 2 == 1 else vXb, vHa if t % 2 == 1 else vHb)
        d = []
        if t + 4 <= 31:
            d.append(dmaB(tm, 0))
            d.append(dmaB(tm, 1) + [advB])
        if t % 2 == 1:
            if (t - 1) // 2 + 3 <= 15:
                d.append(dmaA('s%d' % s_wrA, 0))
                d.append(dmaA('s%d' % s_wrA, 1))
                if not H:
                    d.append(dmaH('s47'))
        else:
            if (t - 2) // 2 + 3 <= 15:
                d.append(dmaA('s%d' % s_wrA, 2))
                d.append(dmaA('s%d' % s_wrA, 3) + advA)
        fl = list(f)
        nd = len(d)
        per = (len(rd) + nd) // (nd + 1) if nd else len(rd)
        ri = 0
        for k in range(nd):
            fl.append(d[k][0])
            take = rd[ri:ri + per]
            ri += len(take)
            if take:
                fl.append(take[0])
            else:
                fl.append('s_nop 0')
            fl += d[k][1:]
            fl += take[1:]
        fl += rd[ri:]
        mf = mfmas(fs)
        n = len(mf)
        interleave(a, mf[:n - 3], fl)
        for m in mf[n - 3:]:
            a(m)
        if not last:
            a('s_waitcnt vmcnt(%d) lgkmcnt(0)' % (nloads(t - 1) + nloads(t)))

    a('s_mov_b32 s%d, 0' % s_cnt)
    a.l.append('.p2align 6')
    a.label(P + 'loop')
    for tm in range(4):
        step(4 + tm, tm)
    a('s_add_u32 s%d, s%d, 1' % (s_cnt, s_cnt))
    a('s_cmp_lt_u32 s%d, 6' % s_cnt)
    a('s_cbranch_scc1 %sloop' % P)
    for t in range(24, 32):
        step(t, t % 4)
    a('s_nop 7')
    a('s_nop 7')

    if H:
        vo, vo6 = vt[0], vt[1]
        a('v_and_b32 v%d, 1, v4' % vt[2])
        a('v_lshrrev_b32 v%d, 1, v4' % vt[3])
        a('v_lshlrev_b32 v%d, 5, v%d' % (vt[4], vt[2]))
        a('v_lshl_add_u32 v%d, v%d, 4, v%d' % (vt[4], vt[3], vt[4]))
        a('s_mov_b32 s%d, %d' % (s_t2, A2_PITCH))
        a('v_mul_lo_u32 v%d, v3, s%d' % (vt[5], s_t2))
        a('v_add_u32 v%d, v%d, v%d' % (vo, vt[5], vt[4]))
        a('v_mul_u32_u24 v%d, 0x%x, v%d' % (vt[4], 16 * A2_PITCH, vt[2]))
        a('v_add_u32 v%d, v%d, v%d' % (vt[5], vt[5], vt[4]))
        a('v_lshl_add_u32 v%d, v%d, 4, v%d' % (vo6, vt[3], vt[5]))
        a('s_lshl_b32 s%d, s25, 2' % s_t0)
        a('s_add_u32 s%d, s%d, s23' % (s_t0, s_t0))
        a('s_mul_i32 s%d, s%d, %d' % (s_t0, s_t0, 64 * A2_PITCH))
        a('s_mul_i32 s%d, s26, 448' % s_t1)
        a('s_add_u32 s%d, s%d, s%d' % (s_t0, s_t0, s_t1))
        a('s_mul_i32 s%d, s24, 224' % s_t1)
        a('s_add_u32 s%d, s%d, s%d' % (s_t0, s_t0, s_t1))
        a('s_add_u32 s48, s%d, 2048' % s_t0)
        for i in range(1, 4):
            a('s_add_u32 s%d, s48, 0x%x' % (48 + i, i * 16 * A2_PITCH))
        pk = 40
        npk = 0

        def pack4(X, Y):
            nonlocal npk
            b = pk + 4 * (npk % 20)
            npk += 1
            a('v_cvt_pk_bf16_f32 v%d, v%d, v%d' % (b, X, X + 1))
            a('v_cvt_pk_bf16_f32 v%d, v%d, v%d' % (b + 1, X + 2, X + 3))
            a('v_cvt_pk_bf16_f32 v%d, v%d, v%d' % (b + 2, Y, Y + 1))
            a('v_cvt_pk_bf16_f32 v%d, v%d, v%d' % (b + 3, Y + 2, Y + 3))
            for k in range(4):
                a('v_pk_max_i16 v%d, v%d, 0' % (b + k, b + k))
            a('s_nop 1')
            a('v_permlane16_swap_b32 v%d, v%d' % (b, b + 2))
            a('v_permlane16_swap_b32 v%d, v%d' % (b + 1, b + 3))
            return b
        for i in range(4):
            for j in (0, 2, 4):
                b = pack4(acc(i, j), acc(i, j + 1))
                a('s_nop 0')
                a('buffer_store_dwordx4 %s, v%d, %s, s%d offen offset:%d' % (vr(b, 4), vo, sr(sO, 4), 48 + i, j * 32))
        for i in (0, 2):
            b = pack4(acc(i, 6), acc(i + 1, 6))
            a('s_nop 0')
            a('buffer_store_dwordx4 %s, v%d, %s, s%d offen offset:%d' % (vr(b, 4), vo6, sr(sO, 4), 48 + i, 192))
        a('s_endpgm')
        return

    AR = 17408
    vs_qk, vs_v, vrow = vt[0], vt[1], vt[2]
    a('v_lshrrev_b32 v%d, 2, v3' % vs_qk)
    a('v_and_b32 v%d, 2, v%d' % (vs_qk, vs_qk))
    a('v_lshrrev_b32 v%d, 1, v3' % vs_v)
    a('v_and_b32 v%d, 2, v%d' % (vs_v, vs_v))
    a('v_lshrrev_b32 v%d, 1, v4' % vt[3])
    a('v_xor_b32 v%d, v%d, v%d' % (vs_qk, vs_qk, vt[3]))
    a('v_xor_b32 v%d, v%d, v%d' % (vs_v, vs_v, vt[3]))
    a('v_and_b32 v%d, 1, v4' % vt[3])
    a('v_lshlrev_b32 v%d, 3, v%d' % (vt[3], vt[3]))
    a('v_lshl_add_u32 v%d, v3, 6, v%d' % (vrow, vt[3]))
    a('s_mul_i32 s%d, s24, %d' % (s_t2, 3 * AR))
    a('s_lshl_b32 s46, s23, 12')
    a('s_add_u32 s46, s46, 1024')
    for j in range(NJ):
        nu = 48 + j
        a('s_lshr_b32 s%d, s%d, 1' % (s_t0, nu))
        a('s_cmp_eq_u32 s%d, 2' % s_t0)
        a('s_cselect_b64 vcc, -1, 0')
        a('s_mul_i32 s%d, s%d, %d' % (s_t0, s_t0, AR))
        a('s_add_u32 s%d, s%d, s%d' % (s_t0, s_t0, s_t2))
        a('s_and_b32 s%d, s%d, 1' % (s_t1, nu))
        a('s_lshl_b32 s%d, s%d, 1' % (s_t1, s_t1))
        a('v_cndmask_b32 v%d, v%d, v%d, vcc' % (vt[3], vs_qk, vs_v))
        a('v_xor_b32 v%d, s%d, v%d' % (vt[3], s_t1, vt[3]))
        a('v_lshl_add_u32 v%d, v%d, 4, v%d' % (vt[3], vt[3], vrow))
        a('v_add_u32 v%d, s%d, v%d' % (vt[4], s_t0, vt[3]))
        a('v_add_u32 v%d, s46, v%d' % (vt[5], vt[4]))
        for i in range(4):
            b = 40 + 2 * ((j * 4 + i) % 16)
            X = acc(i, j)
            a('v_cvt_pk_bf16_f32 v%d, v%d, v%d' % (b, X, X + 1))
            a('v_cvt_pk_bf16_f32 v%d, v%d, v%d' % (b + 1, X + 2, X + 3))
            a('ds_write_b64 v%d, %s offset:%d' % (vt[5], vr(b, 2), i * 1024))
        if j == 0:
            a('v_cvt_pk_bf16_f32 v80, v%d, v%d' % (accH, accH + 1))
            a('v_cvt_pk_bf16_f32 v81, v%d, v%d' % (accH + 2, accH + 3))
            a('ds_write_b64 v%d, v[80:81]' % vt[4])
    a('s_waitcnt lgkmcnt(0)')
    a('s_barrier')
    vq, vv0, vv1 = vt[0], vt[1], vt[2]
    a('v_lshrrev_b32 v%d, 2, v3' % vt[3])
    a('v_and_b32 v%d, 2, v%d' % (vt[3], vt[3]))
    a('v_xor_b32 v%d, v%d, v4' % (vt[3], vt[3]))
    a('v_lshlrev_b32 v%d, 4, v%d' % (vt[3], vt[3]))
    a('v_lshl_add_u32 v%d, v3, 6, v%d' % (vt[3], vt[3]))
    a('s_lshl_b32 s%d, s23, 12' % s_t0)
    a('s_add_u32 s%d, s%d, s%d' % (s_t0, s_t0, s_t2))
    a('v_add_u32 v%d, s%d, v%d' % (vq, s_t0, vt[3]))
    a('v_lshrrev_b32 v%d, 2, v3' % vt[3])
    a('v_lshl_add_u32 v%d, v4, 2, v%d' % (vt[3], vt[3]))
    a('v_lshrrev_b32 v%d, 1, v%d' % (vt[4], vt[3]))
    a('v_and_b32 v%d, 2, v%d' % (vt[4], vt[4]))
    a('v_lshlrev_b32 v%d, 4, v%d' % (vt[4], vt[4]))
    a('v_and_b32 v%d, 3, v3' % vt[5])
    a('v_lshlrev_b32 v%d, 3, v%d' % (vt[5], vt[5]))
    a('v_xor_b32 v%d, v%d, v%d' % (vt[5], vt[5], vt[4]))
    a('v_lshl_add_u32 v%d, v%d, 6, v%d' % (vt[5], vt[3], vt[5]))
    a('v_add_u32 v%d, s%d, v%d' % (vv0, s_t0, vt[5]))
    a('v_xor_b32 v%d, 32, v%d' % (vv1, vv0))
    QF = [40 + 4 * k for k in range(4)]
    KF = [56 + 4 * k for k in range(5)]
    VF = [76, 86]
    for k in range(4):
        a('ds_read_b128 %s, v%d offset:%d' % (vr(QF[k], 4), vq, 1024 + k * 1024))
    for k in range(5):
        a('ds_read_b128 %s, v%d offset:%d' % (vr(KF[k], 4), vq, AR + k * 1024))
    for k in range(5):
        a('ds_read_b64_tr_b16 %s, v%d offset:%d' % (vr(VF[0] + 2 * k, 2), vv0, 2 * AR + k * 1024))
        a('ds_read_b64_tr_b16 %s, v%d offset:%d' % (vr(VF[1] + 2 * k, 2), vv1, 2 * AR + k * 1024))
    vb = [100, 101, 102, 103]
    vb0f = [104, 105]
    vpar_sh = 106
    a('v_and_b32 v%d, 1, v3' % vt[3])
    a('v_lshlrev_b32 v%d, 4, v%d' % (vpar_sh, vt[3]))
    a('v_cmp_eq_u32 s[50:51], 1, v%d' % vt[3])
    a('v_sub_u32 v%d, v3, v%d' % (vt[4], vt[3]))
    a('v_lshlrev_b32 v%d, 2, v4' % vt[5])
    a('v_sub_u32 v%d, v%d, v%d' % (vt[4], vt[4], vt[5]))
    a('v_mov_b32 v%d, 0xff800000' % vt[6])
    for tau in range(2):
        for e2 in range(2):
            off = 16 * (1 - tau) - 2 * e2
            a('v_add_u32 v%d, %d, v%d' % (vt[5], off, vt[4]))
            a('v_cmp_ge_u32 vcc, 14, v%d' % vt[5])
            a('s_nop 1')
            a('v_cndmask_b32 v%d, v%d, 0, vcc' % (vb[2 * tau + e2], vt[6])) if False else \
                a('v_cndmask_b32_e64 v%d, v%d, 0, vcc' % (vb[2 * tau + e2], vt[6]))
    a('s_or_b32 s%d, s25, s23' % s_t0)
    a('s_cmp_eq_u32 s%d, 0' % s_t0)
    a('s_cselect_b64 vcc, -1, 0')
    a('v_cndmask_b32 v%d, v%d, v%d, vcc' % (vb0f[0], vb[0], vt[6]))
    a('v_cndmask_b32 v%d, v%d, v%d, vcc' % (vb0f[1], vb[1], vt[6]))
    a('s_mov_b32 s52, 0x3e3504f3')
    a('s_mov_b32 s53, 0x3fb8aa3b')
    a('s_mov_b32 s54, 0xffff0000')
    a('s_waitcnt lgkmcnt(0)')
    S = [128 + 8 * u for u in range(4)]
    for u in range(4):
        a('v_mfma_f32_16x16x32_bf16 %s, %s, %s, 0' % (vr(S[u], 4), vr(KF[u], 4), vr(QF[u], 4)))
        a('v_mfma_f32_16x16x32_bf16 %s, %s, %s, 0' % (vr(S[u] + 4, 4), vr(KF[u + 1], 4), vr(QF[u], 4)))
    a('s_nop 7')
    a('s_nop 3')
    Lg = [160 + 4 * u for u in range(4)]
    T1 = [176 + u for u in range(4)]
    T2 = [180 + u for u in range(4)]
    PP = [184 + 4 * u for u in range(4)]
    OT = [200 + 8 * u for u in range(4)]

    def forall(fn):
        for u in range(4):
            fn(u)
    for k in range(4):
        forall(lambda u: a('v_cndmask_b32_e64 v%d, v%d, v%d, s[50:51]' % (Lg[u] + k, S[u] + 2 * k, S[u] + 2 * k + 1)))
    for rnd in range(2):
        for k in (0, 2):
            forall(lambda u: a('v_cvt_pk_bf16_f32 v%d, v%d, v%d' % (Lg[u] + k, Lg[u] + k, Lg[u] + k + 1)))
        for k in (0, 2):
            forall(lambda u: a('v_and_b32 v%d, s54, v%d' % (Lg[u] + k + 1, Lg[u] + k)))
            forall(lambda u: a('v_lshlrev_b32 v%d, 16, v%d' % (Lg[u] + k, Lg[u] + k)))
        if rnd == 0:
            for k in range(4):
                forall(lambda u: a('v_mul_f32 v%d, s52, v%d' % (Lg[u] + k, Lg[u] + k)))
    for k in range(4):
        forall(lambda u: a('v_add_f32 v%d, v%d, v%d' % (Lg[u] + k, Lg[u] + k, (vb0f[k] if (u == 0 and k < 2) else vb[k]))))
    forall(lambda u: a('v_max3_f32 v%d, v%d, v%d, v%d' % (T1[u], Lg[u], Lg[u] + 1, Lg[u] + 2)))
    forall(lambda u: a('v_max_f32 v%d, v%d, v%d' % (T1[u], T1[u], Lg[u] + 3)))
    for sw in ('16', '32'):
        forall(lambda u: a('v_mov_b32 v%d, v%d' % (T2[u], T1[u])))
        a('s_nop 1')
        forall(lambda u: a('v_permlane%s_swap_b32 v%d, v%d' % (sw, T1[u], T2[u])))
        a('s_nop 1')
        forall(lambda u: a('v_max_f32 v%d, v%d, v%d' % (T1[u], T1[u], T2[u])))
    for k in range(4):
        forall(lambda u: a('v_sub_f32 v%d, v%d, v%d' % (Lg[u] + k, Lg[u] + k, T1[u])))
    for k in range(4):
        forall(lambda u: a('v_mul_f32 v%d, s53, v%d' % (Lg[u] + k, Lg[u] + k)))
    for k in range(4):
        forall(lambda u: a('v_exp_f32 v%d, v%d' % (Lg[u] + k, Lg[u] + k)))
    a('s_nop 0')
    forall(lambda u: a('v_add_f32 v%d, v%d, v%d' % (T1[u], Lg[u], Lg[u] + 1)))
    forall(lambda u: a('v_add_f32 v%d, v%d, v%d' % (T2[u], Lg[u] + 2, Lg[u] + 3)))
    forall(lambda u: a('v_add_f32 v%d, v%d, v%d' % (T1[u], T1[u], T2[u])))
    for sw in ('16', '32'):
        forall(lambda u: a('v_mov_b32 v%d, v%d' % (T2[u], T1[u])))
        a('s_nop 1')
        forall(lambda u: a('v_permlane%s_swap_b32 v%d, v%d' % (sw, T1[u], T2[u])))
        a('s_nop 1')
        forall(lambda u: a('v_add_f32 v%d, v%d, v%d' % (T1[u], T1[u], T2[u])))
    forall(lambda u: a('v_rcp_f32 v%d, v%d' % (T1[u], T1[u])))
    a('s_nop 0')
    for k in range(4):
        forall(lambda u: a('v_mul_f32 v%d, v%d, v%d' % (Lg[u] + k, Lg[u] + k, T1[u])))
    for k in range(4):
        forall(lambda u: a('v_cvt_pk_bf16_f32 v%d, v%d, 0' % (PP[u] + k, Lg[u] + k)))
    for k in range(4):
        forall(lambda u: a('v_lshlrev_b32 v%d, v%d, v%d' % (PP[u] + k, vpar_sh, PP[u] + k)))
    a('s_nop 1')
    for u in range(4):
        for dt in range(2):
            a('v_mfma_f32_16x16x32_bf16 %s, %s, %s, 0' % (vr(OT[u] + 4 * dt, 4), vr(VF[dt] + 2 * u, 4), vr(PP[u], 4)))
    vo = vt[0]
    a('v_and_b32 v%d, 1, v4' % vt[2])
    a('v_lshrrev_b32 v%d, 1, v4' % vt[3])
    a('v_lshlrev_b32 v%d, 5, v%d' % (vt[4], vt[2]))
    a('v_lshl_add_u32 v%d, v%d, 4, v%d' % (vt[4], vt[3], vt[4]))
    a('s_mov_b32 s%d, %d' % (s_t2, A2_PITCH))
    a('v_mul_lo_u32 v%d, v3, s%d' % (vt[5], s_t2))
    a('v_add_u32 v%d, v%d, v%d' % (vo, vt[5], vt[4]))
    a('s_lshl_b32 s%d, s25, 2' % s_t0)
    a('s_add_u32 s%d, s%d, s23' % (s_t0, s_t0))
    a('s_mul_i32 s%d, s%d, %d' % (s_t0, s_t0, 64 * A2_PITCH))
    a('s_lshl_b32 s%d, s26, 7' % s_t1)
    a('s_add_u32 s%d, s%d, s%d' % (s_t0, s_t0, s_t1))
    a('s_lshl_b32 s%d, s24, 6' % s_t1)
    a('s_add_u32 s%d, s%d, s%d' % (s_t0, s_t0, s_t1))
    a('s_nop 7')
    for u in range(4):
        b = 40 + 4 * u
        a('v_cvt_pk_bf16_f32 v%d, v%d, v%d' % (b, OT[u], OT[u] + 1))
        a('v_cvt_pk_bf16_f32 v%d, v%d, v%d' % (b + 1, OT[u] + 2, OT[u] + 3))
        a('v_cvt_pk_bf16_f32 v%d, v%d, v%d' % (b + 2, OT[u] + 4, OT[u] + 5))
        a('v_cvt_pk_bf16_f32 v%d, v%d, v%d' % (b + 3, OT[u] + 6, OT[u] + 7))
        a('s_nop 1')
        a('v_permlane16_swap_b32 v%d, v%d' % (b, b + 2))
        a('v_permlane16_swap_b32 v%d, v%d' % (b + 1, b + 3))
        a('s_nop 0')
        a('buffer_store_dwordx4 %s, v%d, %s, s%d offen' % (vr(b, 4), vo, sr(sO, 4), s_t0))
        if u < 3:
            a('s_add_u32 s%d, s%d, 0x%x' % (s_t0, s_t0, 16 * A2_PITCH))
    a('s_endpgm')


def gen_k1(a):
    kernel_header(a, 'g1_kernel')
    a('s_cmp_ge_u32 s2, 256')
    a('s_cbranch_scc1 L_k1_end')
    a('s_load_dwordx2 s[4:5], s[0:1], 8')
    a('s_load_dwordx2 s[6:7], s[0:1], 32')
    a('s_load_dwordx2 s[20:21], s[0:1], 64')
    a('v_lshrrev_b32 v1, 6, v0')
    a('v_and_b32 v2, 63, v0')
    a('v_readfirstlane_b32 s22, v1')
    a('v_and_b32 v3, 15, v0')
    a('v_lshrrev_b32 v4, 4, v2')
    a('s_lshr_b32 s23, s22, 1')
    a('s_and_b32 s24, s22, 1')
    a('s_and_b32 s27, s2, 7')
    a('s_lshr_b32 s28, s2, 3')
    a('s_and_b32 s25, s27, 1')
    a('s_lshl_b32 s25, s25, 2')
    a('s_and_b32 s29, s28, 3')
    a('s_add_u32 s25, s25, s29')
    a('s_lshr_b32 s28, s28, 2')
    a('s_lshr_b32 s26, s27, 1')
    a('s_lshl_b32 s26, s26, 2')
    a('s_lshr_b32 s29, s28, 1')
    a('s_add_u32 s26, s26, s29')
    a('s_and_b32 s28, s28, 1')
    a('s_waitcnt lgkmcnt(0)')
    a('s_cmp_eq_u32 s28, 0')
    a('s_cbranch_scc1 L_k1q_start')
    k1_type(a, 'h')
    k1_type(a, 'q')
    a.label('L_k1_end')
    a('s_endpgm')


def gen_k2(a, R=5):
    P = 'L_k2_'
    NU = 36
    SLOT = 32768
    kernel_header(a, 'g2_kernel')
    a('s_cmp_ge_u32 s2, 256')
    a('s_cbranch_scc1 L_k2_end')
    a('s_load_dwordx2 s[4:5], s[0:1], 16')
    a('s_load_dwordx2 s[6:7], s[0:1], 40')
    a('s_load_dwordx2 s[20:21], s[0:1], 64')
    a('s_load_dwordx2 s[56:57], s[0:1], 0')
    a('s_load_dwordx2 s[58:59], s[0:1], 48')
    a('v_lshrrev_b32 v1, 6, v0')
    a('v_and_b32 v2, 63, v0')
    a('v_readfirstlane_b32 s22, v1')
    a('v_and_b32 v3, 15, v0')
    a('v_lshrrev_b32 v4, 4, v2')
    a('s_lshr_b32 s23, s22, 2')
    a('s_lshr_b32 s24, s22, 1')
    a('s_and_b32 s24, s24, 1')
    a('s_and_b32 s25, s22, 1')
    a('s_and_b32 s26, s2, 1')
    a('s_lshr_b32 s27, s2, 1')
    a('s_and_b32 s27, s27, 3')
    a('s_lshl_b32 s27, s27, 2')
    a('s_lshr_b32 s28, s2, 6')
    a('s_add_u32 s27, s27, s28')
    a('s_lshr_b32 s28, s2, 3')
    a('s_and_b32 s28, s28, 7')
    sA, sB = 8, 12
    s_rd, s_wr, s_kA, s_kB, s_w2k, s_up, s_cnt, s_off2 = 30, 31, 32, 33, 34, 35, 36, 37
    s_t0, s_t1, s_t2 = 40, 41, 42
    vWb = [8, 9, 10, 11]
    vW = [12, 13, 14, 15]
    vXkb, vXgb, vXk, vXg = 16, 17, 18, 19
    voffA = [20, 21]
    voffB = [22, 23]
    vt = list(range(24, 32))
    FS = [32, 64]
    ACC = 96

    def XF(s, i):
        return FS[s] + 4 * i

    def WF(s, j):
        return FS[s] + 16 + 4 * j

    def acc(i, j):
        return ACC + 4 * (i * 4 + j)
    a('s_waitcnt lgkmcnt(0)')
    srd(a, sA, 20, 21, 2048 * A2_PITCH, add=WS_A2)
    a('s_cmp_eq_u32 s26, 0')
    a('s_cselect_b32 s12, s4, s6')
    a('s_cselect_b32 s13, s5, s7')
    a('s_mov_b32 s14, 0x%x' % (3584 * 2048))
    a('s_cselect_b32 s14, 0x%x, s14' % (1024 * 2048))
    a('s_mov_b32 s15, 0x%x' % SRD3)
    a('s_cselect_b32 s%d, 0, 0x%x' % (s_kB, 1280 * 2048))
    a('s_cselect_b32 s%d, 0, 0x%x' % (s_off2, 2304 * 2048))
    a('s_lshl_b32 s%d, s28, 8' % s_t0)
    a('s_add_u32 s%d, s%d, s%d' % (s_kB, s_kB, s_t0))
    a('s_add_u32 s%d, s%d, s%d' % (s_off2, s_off2, s_t0))
    a('s_mul_i32 s%d, s27, %d' % (s_kA, 128 * A2_PITCH))
    a('s_mul_i32 s%d, s26, 4608' % s_t0)
    a('s_add_u32 s%d, s%d, s%d' % (s_kA, s_kA, s_t0))
    e, sl = vt[0], vt[1]
    a('v_lshrrev_b32 v%d, 3, v2' % e)
    a('v_and_b32 v%d, 7, v2' % sl)
    a('v_xor_b32 v%d, v%d, v%d' % (vt[2], sl, e))
    a('v_lshlrev_b32 v%d, 4, v%d' % (vt[2], vt[2]))
    a('s_lshl_b32 s%d, s22, 4' % s_t0)
    a('v_add_u32 v%d, s%d, v%d' % (vt[3], s_t0, e))
    a('s_mov_b32 s%d, %d' % (s_t2, A2_PITCH))
    a('v_mul_lo_u32 v%d, v%d, s%d' % (vt[3], vt[3], s_t2))
    a('v_add_u32 v%d, v%d, v%d' % (voffA[0], vt[3], vt[2]))
    a('v_add_u32 v%d, 0x%x, v%d' % (voffA[1], 8 * A2_PITCH, voffA[0]))
    a('v_lshrrev_b32 v%d, 2, v%d' % (vt[2], e))
    a('v_and_b32 v%d, 3, v%d' % (vt[3], e))
    a('v_lshl_add_u32 v%d, v%d, 3, v%d' % (vt[2], vt[2], vt[3]))
    a('s_lshl_b32 s%d, s23, 5' % s_t0)
    a('s_lshl_b32 s%d, s25, 2' % s_t1)
    a('s_add_u32 s%d, s%d, s%d' % (s_t0, s_t0, s_t1))
    a('v_add_u32 v%d, s%d, v%d' % (vt[2], s_t0, vt[2]))
    a('v_and_b32 v%d, 6, v%d' % (vt[3], e))
    a('v_xor_b32 v%d, v%d, v%d' % (vt[3], vt[3], sl))
    a('v_lshlrev_b32 v%d, 4, v%d' % (vt[3], vt[3]))
    a('v_lshl_add_u32 v%d, v%d, 11, v%d' % (vt[2], vt[2], vt[3]))
    a('s_lshl_b32 s%d, s24, 7' % s_t0)
    a('v_add_u32 v%d, s%d, v%d' % (voffB[0], s_t0, vt[2]))
    a('v_add_u32 v%d, 0x%x, v%d' % (voffB[1], 16 * 2048, voffB[0]))
    a('s_lshl_b32 s%d, s22, 11' % s_w2k)
    a('s_mov_b32 s%d, 0' % s_up)

    def dma(slot):
        g = []
        for q in range(2):
            if isinstance(slot, int):
                m = 's_add_u32 m0, s%d, 0x%x' % (s_w2k, slot + q * 1024)
            else:
                m = 's_add_u32 m0, %s, 0x%x' % (slot, q * 1024)
            g.append([m, 'buffer_load_dwordx4 v%d, %s, s%d offen lds' % (voffA[q], sr(sA, 4), s_kA)])
        for q in range(2):
            if isinstance(slot, int):
                m = 's_add_u32 m0, s%d, 0x%x' % (s_w2k, slot + 16384 + q * 1024)
            else:
                m = 's_add_u32 m0, %s, 0x%x' % (slot, 16384 + q * 1024)
            g.append([m, 'buffer_load_dwordx4 v%d, %s, s%d offen lds' % (voffB[q], sr(sB, 4), s_kB)])
        g[-1] += ['s_add_u32 s%d, s%d, 128' % (s_kA, s_kA),
                  's_add_u32 s%d, s%d, 0x%x' % (s_kB, s_kB, 64 * 2048),
                  's_add_u32 s%d, s%d, 1' % (s_up, s_up),
                  's_cmp_eq_u32 s%d, 16' % s_up,
                  's_cselect_b32 s12, s6, s12',
                  's_cselect_b32 s13, s7, s13',
                  's_cselect_b32 s14, 0x%x, s14' % (3584 * 2048),
                  's_cselect_b32 s%d, s%d, s%d' % (s_kB, s_off2, s_kB)]
        return g
    for u in range(R):
        for g in dma(u * SLOT):
            a(g[0])
            a('s_nop 0')
            for s in g[1:]:
                a(s)
    a('s_lshl_b32 s%d, s23, 2' % s_t0)
    a('v_add_u32 v%d, s%d, v4' % (vt[0], s_t0))
    a('v_and_b32 v%d, 7, v3' % vt[1])
    a('v_xor_b32 v%d, v%d, v%d' % (vt[0], vt[0], vt[1]))
    a('v_lshlrev_b32 v%d, 4, v%d' % (vt[0], vt[0]))
    a('v_lshl_add_u32 v%d, v3, 7, v%d' % (vt[0], vt[0]))
    a('s_lshl_b32 s%d, s24, 13' % s_t0)
    a('s_lshl_b32 s%d, s23, 12' % s_t1)
    a('s_add_u32 s%d, s%d, s%d' % (s_t0, s_t0, s_t1))
    a('v_add_u32 v%d, s%d, v%d' % (vXkb, s_t0, vt[0]))
    a('v_xor_b32 v%d, 0x1000, v%d' % (vXgb, vXkb))
    a('v_lshrrev_b32 v%d, 2, v3' % vt[0])
    a('v_lshl_add_u32 v%d, v4, 2, v%d' % (vt[0], vt[0]))
    a('v_and_b32 v%d, 6, v%d' % (vt[1], vt[0]))
    a('v_and_b32 v%d, 3, v3' % vt[2])
    a('v_lshlrev_b32 v%d, 3, v%d' % (vt[2], vt[2]))
    a('v_lshl_add_u32 v%d, v%d, 7, v%d' % (vt[2], vt[0], vt[2]))
    a('s_lshl_b32 s%d, s23, 13' % s_t0)
    a('s_lshl_b32 s%d, s25, 12' % s_t1)
    a('s_add_u32 s%d, s%d, s%d' % (s_t0, s_t0, s_t1))
    a('s_add_u32 s%d, s%d, 0x4000' % (s_t0, s_t0))
    a('v_add_u32 v%d, s%d, v%d' % (vt[2], s_t0, vt[2]))
    for j in range(4):
        a('v_xor_b32 v%d, %d, v%d' % (vt[3], 2 * j, vt[1]))
        a('v_lshl_add_u32 v%d, v%d, 4, v%d' % (vWb[j], vt[3], vt[2]))
    for k in range(64):
        a('v_mov_b32 v%d, 0' % (ACC + k))

    def reads(s, xk, xg, w):
        r = []
        for i in range(4):
            r.append('ds_read_b128 %s, v%d offset:%d' % (vr(XF(s, i), 4), xk if i < 2 else xg, (i & 1) * 2048))
        for j in range(4):
            r.append('ds_read_b64_tr_b16 %s, v%d' % (vr(WF(s, j), 2), w[j]))
            r.append('ds_read_b64_tr_b16 %s, v%d offset:2048' % (vr(WF(s, j) + 2, 2), w[j]))
        return r

    def mfmas(s):
        m = []
        for j in range(4):
            for i in range(4):
                m.append('v_mfma_f32_16x16x32_bf16 %s, %s, %s, %s' % (vr(acc(i, j), 4), vr(WF(s, j), 4), vr(XF(s, i), 4), vr(acc(i, j), 4)))
        return m

    def nl(u):
        return 4 if u + R < NU else 0
    a('s_waitcnt vmcnt(%d)' % (4 * (R - 1)))
    a('s_barrier')
    for s in reads(0, vXkb, vXgb, vWb):
        a(s)
    a('s_mov_b32 s%d, 0' % s_rd)
    a('s_waitcnt vmcnt(%d) lgkmcnt(0)' % (4 * (R - 2)))

    def unit(u):
        a('s_barrier')
        fs = u % 2
        last = u == NU - 1
        f = []
        rd = []
        if not last:
            f += ['s_add_u32 s%d, s%d, s%d' % (s_wr, s_rd, s_w2k),
                  's_add_u32 s%d, s%d, 0x%x' % (s_rd, s_rd, SLOT),
                  's_cmp_eq_u32 s%d, 0x%x' % (s_rd, R * SLOT),
                  's_cselect_b32 s%d, 0, s%d' % (s_rd, s_rd),
                  'v_add_u32 v%d, s%d, v%d' % (vXk, s_rd, vXkb),
                  'v_add_u32 v%d, s%d, v%d' % (vXg, s_rd, vXgb)]
            f2 = ['v_add_u32 v%d, s%d, v%d' % (vW[j], s_rd, vWb[j]) for j in range(4)]
            rd = reads(1 - fs, vXk, vXg, vW)
            rd = rd[:2] + f2[:2] + rd[2:4] + f2[2:] + rd[4:]
        d = dma('s%d' % s_wr) if nl(u) else []
        fl = list(f)
        nd = len(d)
        per = (len(rd) + nd) // (nd + 1) if nd else len(rd)
        ri = 0
        for k in range(nd):
            fl.append(d[k][0])
            take = rd[ri:ri + per]
            ri += len(take)
            fl.append(take[0] if take else 's_nop 0')
            fl += d[k][1:]
            fl += take[1:]
        fl += rd[ri:]
        mf = mfmas(fs)
        n = len(mf)
        interleave(a, mf[:n - 2], fl)
        for m in mf[n - 2:]:
            a(m)
        if not last:
            a('s_waitcnt vmcnt(%d) lgkmcnt(0)' % sum(nl(u - k) for k in range(R - 2)))
    NLOOP = (NU - R) // 2
    a('s_mov_b32 s%d, 0' % s_cnt)
    a.l.append('.p2align 6')
    a.label(P + 'loop')
    unit(2)
    unit(3)
    a('s_add_u32 s%d, s%d, 1' % (s_cnt, s_cnt))
    a('s_cmp_lt_u32 s%d, %d' % (s_cnt, NLOOP))
    a('s_cbranch_scc1 %sloop' % P)
    for u in range(2 * NLOOP, NU):
        unit(u)
    a('v_lshlrev_b32 v%d, 4, v2' % vt[0])
    a('s_lshl_b32 s%d, s22, 13' % s_t0)
    a('v_add_u32 v%d, s%d, v%d' % (vt[1], s_t0, vt[0]))
    a('s_xor_b32 s%d, s%d, 0x8000' % (s_t1, s_t0))
    a('v_add_u32 v%d, s%d, v%d' % (vt[2], s_t1, vt[0]))
    a('s_nop 7')
    a('s_nop 3')
    for q in range(8):
        a('ds_write_b128 v%d, %s offset:%d' % (vt[1], vr(ACC + 32 + 4 * q, 4), q * 1024))
    a('s_waitcnt lgkmcnt(0)')
    a('s_barrier')
    for q in range(8):
        a('ds_read_b128 %s, v%d offset:%d' % (vr(32 + 4 * q, 4), vt[2], q * 1024))
    srd(a, 8, 20, 21, 8 << 20, add=WS_PART)
    srd(a, 12, 20, 21, 1024 * 128, add=WS_FLAG)
    srd(a, 60, 56, 57, 2048 * 2048)
    srd(a, 64, 58, 59, 2048 * 2048)
    a('s_lshl_b32 s%d, s27, 3' % s_t0)
    a('s_add_u32 s%d, s%d, s28' % (s_t0, s_t0))
    a('s_lshl_b32 s%d, s%d, 3' % (s_t0, s_t0))
    a('s_lshl_b32 s%d, s23, 1' % s_t1)
    a('s_add_u32 s%d, s%d, s%d' % (s_t0, s_t0, s_t1))
    a('s_add_u32 s%d, s%d, s25' % (s_t0, s_t0))
    a('s_xor_b32 s%d, s24, 1' % s_t1)
    a('s_lshl_b32 s%d, s%d, 2' % (s_t1, s_t1))
    a('s_add_u32 s%d, s%d, s%d' % (s_t0, s_t0, s_t1))
    a('s_lshl_b32 s44, s%d, 13' % s_t0)
    a('s_lshl_b32 s45, s%d, 7' % s_t0)
    a('s_waitcnt lgkmcnt(0)')
    for k in range(32):
        a('v_add_f32 v%d, v%d, v%d' % (ACC + k, ACC + k, 32 + k))
    a('s_cmp_eq_u32 s24, s26')
    a('s_cbranch_scc1 L_k2_cons')
    for q in range(8):
        a('buffer_store_dwordx4 %s, v%d, s[8:11], s44 offen offset:%d sc1' % (vr(ACC + 4 * q, 4), vt[0], (q % 4) * 1024)
          if q < 4 else
          'buffer_store_dwordx4 %s, v%d, s[8:11], s46 offen offset:%d sc1' % (vr(ACC + 4 * q, 4), vt[0], (q % 4) * 1024))
        if q == 3:
            a('s_add_u32 s46, s44, 4096')
    a('v_mov_b32 v%d, 1' % vt[3])
    a('v_mov_b32 v%d, 0' % vt[4])
    a('s_waitcnt vmcnt(0)')
    a('s_mov_b64 exec, 1')
    a('buffer_store_dword v%d, v%d, s[12:15], s45 offen sc1' % (vt[3], vt[4]))
    a('s_endpgm')
    a.label('L_k2_cons')
    a('v_lshlrev_b32 v%d, 3, v4' % vt[3])
    a('v_lshl_add_u32 v%d, v3, 11, v%d' % (vt[3], vt[3]))
    a('s_lshl_b32 s%d, s27, 2' % s_t0)
    a('s_lshl_b32 s%d, s24, 1' % s_t1)
    a('s_add_u32 s%d, s%d, s%d' % (s_t0, s_t0, s_t1))
    a('s_add_u32 s%d, s%d, s23' % (s_t0, s_t0))
    a('s_lshl_b32 s%d, s%d, 16' % (s_t0, s_t0))
    a('s_lshl_b32 s%d, s28, 8' % s_t1)
    a('s_add_u32 s%d, s%d, s%d' % (s_t0, s_t0, s_t1))
    a('s_lshl_b32 s%d, s25, 7' % s_t1)
    a('s_add_u32 s47, s%d, s%d' % (s_t0, s_t1))
    a('s_add_u32 s48, s47, 0x8000')
    for s in range(2):
        for j in range(4):
            a('buffer_load_dwordx2 %s, v%d, s[60:63], s%d offen offset:%d' % (vr(64 + 2 * (s * 4 + j), 2), vt[3], 47 + s, j * 32))
    a('v_and_b32 v%d, 1, v4' % vt[4])
    a('v_lshrrev_b32 v%d, 1, v4' % vt[5])
    a('v_lshlrev_b32 v%d, 5, v%d' % (vt[4], vt[4]))
    a('v_lshl_add_u32 v%d, v%d, 4, v%d' % (vt[4], vt[5], vt[4]))
    a('v_lshl_add_u32 v%d, v3, 11, v%d' % (vt[4], vt[4]))
    a('v_mov_b32 v%d, 0' % vt[5])
    a('s_add_u32 s46, s44, 4096')
    a('s_mov_b32 s49, 0xffff0000')
    a('s_mov_b32 s51, 0')
    a.label('L_k2_poll')
    a('buffer_load_dword v%d, v%d, s[12:15], s45 offen sc1' % (vt[6], vt[5]))
    a('s_waitcnt vmcnt(0)')
    a('v_readfirstlane_b32 s50, v%d' % vt[6])
    a('s_nop 3')
    a('s_cmp_eq_u32 s50, 1')
    a('s_cbranch_scc1 L_k2_go')
    a('s_sleep 1')
    a('s_add_u32 s51, s51, 1')
    a('s_cmp_lt_u32 s51, 0x40000')
    a('s_cbranch_scc1 L_k2_poll')
    a.label('L_k2_go')
    for q in range(8):
        a('buffer_load_dwordx4 %s, v%d, s[8:11], s%d offen offset:%d sc1' % (vr(32 + 4 * q, 4), vt[0], 44 if q < 4 else 46, (q % 4) * 1024))
    for t in range(8):
        xr = 64 + 2 * t
        A = ACC + 4 * t
        a('v_lshlrev_b32 v%d, 16, v%d' % (80, xr))
        a('v_and_b32 v%d, s49, v%d' % (81, xr))
        a('v_lshlrev_b32 v%d, 16, v%d' % (82, xr + 1))
        a('v_and_b32 v%d, s49, v%d' % (83, xr + 1))
        for k in range(4):
            a('v_add_f32 v%d, v%d, v%d' % (A + k, A + k, 80 + k))
    for s in range(2):
        for jp in range(2):
            t0 = s * 4 + 2 * jp
            a('s_waitcnt vmcnt(%d)' % (8 - (t0 + 2) + (s * 2 + jp)))
            for k in range(8):
                a('v_add_f32 v%d, v%d, v%d' % (ACC + 4 * t0 + k, ACC + 4 * t0 + k, 32 + 4 * t0 + k))
            b = 64 + 4 * (s * 2 + jp)
            X = ACC + 4 * t0
            a('v_cvt_pk_bf16_f32 v%d, v%d, v%d' % (b, X, X + 1))
            a('v_cvt_pk_bf16_f32 v%d, v%d, v%d' % (b + 1, X + 2, X + 3))
            a('v_cvt_pk_bf16_f32 v%d, v%d, v%d' % (b + 2, X + 4, X + 5))
            a('v_cvt_pk_bf16_f32 v%d, v%d, v%d' % (b + 3, X + 6, X + 7))
            a('s_nop 1')
            a('v_permlane16_swap_b32 v%d, v%d' % (b, b + 2))
            a('v_permlane16_swap_b32 v%d, v%d' % (b + 1, b + 3))
            a('s_nop 0')
            a('buffer_store_dwordx4 %s, v%d, s[64:67], s%d offen offset:%d' % (vr(b, 4), vt[4], 47 + s, jp * 64))
    a.label('L_k2_end')
    a('s_endpgm')


def main():
    out = sys.argv[1] if len(sys.argv) > 1 else 'cdna_kernels/%s.s' % NAME
    hdr = open('cdna_kernels/%s.s.ref' % NAME).read().split('\n')
    head = [l for l in hdr[:10]]
    a = Asm()
    for l in head:
        a.l.append(l)
    a.l.append('; @launch kernel=ln_kernel grid=(512,1,1) block=(256,1,1) lds=0')
    a.l.append('; @launch kernel=g1_kernel grid=(256,1,1) block=(512,1,1) lds=163840')
    a.l.append('; @launch kernel=g2_kernel grid=(256,1,1) block=(512,1,1) lds=163840')
    a.l.append('.amdgcn_target "amdgcn-amd-amdhsa--gfx950"')
    a.l.append('.text')
    gen_k0(a)
    gen_k1(a)
    gen_k2(a)
    a.l.append('.section .rodata,"a"')
    a.l.append(kernel_desc('ln_kernel', 56, 32))
    a.l.append(kernel_desc('g1_kernel', 240, 64))
    a.l.append(kernel_desc('g2_kernel', 160, 72))
    open(out, 'w').write(a.text())


if __name__ == '__main__':
    main()
```
